```python
import torch

def _softmax(x, axis=-1):
    return torch.softmax(x, dim=axis)
def _gelu(x):
    return torch.nn.functional.gelu(x, approximate="tanh")
def _silu(x):
    return torch.nn.functional.silu(x)
def _sigmoid(x):
    return torch.sigmoid(x)
def _layernorm(x, axis=-1, eps=1e-5):
    m = x.mean(dim=axis, keepdim=True)
    v = x.var(dim=axis, keepdim=True, unbiased=False)
    return (x - m) / torch.sqrt(v + eps)
def _scatter_add(tgt, idx, src, axis=0):
    return tgt.clone().index_add_(axis, idx, src)
def _segment_sum(src, seg, n):
    out = torch.zeros((n,) + src.shape[1:], dtype=src.dtype)
    return out.index_add_(0, seg, src)
def _pad(x, pw):
    flat = tuple(v for pair in reversed(pw) for v in pair)
    return torch.nn.functional.pad(x, flat)

kernel_name = 'standalone__mha_softmax__near_ridge'

def setup_inputs():

    _w = (lambda a: (lambda t: t.to(torch.bfloat16) if t.is_floating_point() else t)(torch.as_tensor(a)))
    B, H, Sq, Sk, D = 16, 32, 192, 1024, 128
    return {
        "q": _w((lambda *s: torch.randn(*s, dtype=torch.bfloat16) * 0.8)(B, H, Sq, D)),
        "k": _w((lambda *s: torch.randn(*s, dtype=torch.bfloat16) * 0.8)(B, H, Sk, D)),
        "v": _w((lambda *s: torch.randn(*s, dtype=torch.bfloat16) * 0.05)(B, H, Sk, D)),
    }

def reference(q, k, v):
    scale = q.shape[-1] ** -0.5
    scores = torch.einsum("bhqd,bhkd->bhqk", q, k) * scale
    p = _softmax(scores, axis=-1)
    return torch.einsum("bhqk,bhkd->bhqd", p, v)
```

```python
import sys, struct, math

KN = "standalone__mha_softmax__near_ridge_kernel"
HEADER = open("standalone__mha_softmax__near_ridge.s.ref").read().split("; Override launch")[0]

def f2u(x):
    return struct.unpack("<I", struct.pack("<f", x))[0]

KSTR, VSTR = 1056, 1088
KT, VT = 8 * KSTR, 8 * VSTR
PRIV = 8704

def gen(path, slots=3, aux="nt", qaux="nt", staux="nt", omode="lds", stamps=False, force_fb=False, prio=0):
    L = []
    e = L.append
    headreg = slots * (KT + VT)
    lds = max(2 * headreg, 12 * PRIV)
    C = (1.0 / math.sqrt(128.0)) * math.log2(math.e)
    S, F, Q, O = 8, 24, 56, 88
    def vr(b, n): return "v[%d:%d]" % (b, b + n - 1)

    e(HEADER.rstrip())
    e("; @launch grid=(256,1,1) block=(768,1,1) lds=%d" % lds)
    e('.amdgcn_target "amdgcn-amd-amdhsa--gfx950"')
    e(".text\n.globl %s\n.p2align 8\n.type %s,@function\n%s:" % (KN, KN, KN))
    e("s_cmp_ge_u32 s2, 256")
    e("s_cbranch_scc1 L_end")
    if stamps: e("s_memrealtime s[60:61]")
    e("s_load_dwordx4 s[4:7], s[0:1], 0")
    e("s_load_dwordx4 s[8:11], s[0:1], 16")
    if stamps: e("s_load_dwordx2 s[58:59], s[0:1], 40")
    e("v_lshrrev_b32 v1, 6, v0")
    e("v_and_b32 v0, 63, v0")
    e("v_readfirstlane_b32 s3, v1")
    e("v_and_b32 v9, 31, v0")
    e("v_lshrrev_b32 v10, 5, v0")
    e("v_and_b32 v11, 7, v0")
    e("v_bfe_u32 v12, v0, 3, 2")
    e("v_mul_u32_u24 v1, %d, v11" % KSTR)
    e("v_lshl_add_u32 v1, v12, 8, v1")
    e("v_and_b32 v13, 1, v12")
    e("v_xor_b32 v13, v13, v10")
    e("v_lshl_add_u32 v1, v13, 4, v1")
    e("v_bfe_u32 v11, v0, 2, 2")
    e("v_lshl_add_u32 v11, v10, 2, v11")
    e("v_mul_u32_u24 v2, %d, v11" % VSTR)
    e("v_bfe_u32 v12, v0, 4, 1")
    e("v_lshl_add_u32 v2, v12, 5, v2")
    e("v_and_b32 v12, 3, v0")
    e("v_lshl_add_u32 v2, v12, 3, v2")
    e("v_lshlrev_b32 v14, 8, v9")
    e("v_lshl_add_u32 v14, v10, 4, v14")
    e("v_bfe_u32 v12, v0, 4, 1")
    e("v_xor_b32 v15, v12, v0")
    e("v_lshlrev_b32 v15, 4, v15")
    e("v_lshlrev_b32 v16, 4, v0")
    e("s_cmp_ge_u32 s3, 6")
    e("s_cselect_b32 s30, 1, 0")
    e("s_mul_i32 s31, s30, 6")
    e("s_sub_u32 s31, s3, s31")
    e("s_lshl_b32 s32, s2, 1")
    e("s_add_u32 s32, s32, s30")
    e("s_mul_i32 s33, s32, 49152")
    e("s_lshl_b32 s31, s31, 13")
    e("s_add_u32 s33, s33, s31")
    e("s_mul_i32 s34, s30, %d" % headreg)
    e("s_mov_b32 s50, 0x%08x" % f2u(C))
    e("s_waitcnt lgkmcnt(0)")
    e("s_add_u32 s12, s4, s33\ns_addc_u32 s13, s5, 0\ns_mov_b32 s14, 8192\ns_mov_b32 s15, 0x20000")
    for s in range(8):
        e("buffer_load_dwordx4 %s, v14, s[12:15], 0 offen offset:%d %s" % (vr(Q + 4 * s, 4), s * 32, qaux))
    e("s_add_u32 s24, s10, s33\ns_addc_u32 s25, s11, 0\ns_mov_b32 s26, 8192\ns_mov_b32 s27, 0x20000")
    e("s_lshr_b32 s35, s3, 2")
    e("s_and_b32 s35, s35, 1")
    e("s_lshl_b32 s36, s2, 1")
    e("s_add_u32 s36, s36, s35")
    e("s_lshl_b32 s36, s36, 18")
    e("s_and_b32 s37, s3, 1")
    e("s_bitcmp1_b32 s3, 1")
    e("s_cselect_b32 s16, s8, s6")
    e("s_cselect_b32 s17, s9, s7")
    e("s_cselect_b32 s38, %d, %d" % (VSTR - 1024, KSTR - 1024))
    e("s_cselect_b32 s40, %d, 0" % (slots * KT))
    e("s_cselect_b64 vcc, -1, 0")
    e("s_add_u32 s16, s16, s36\ns_addc_u32 s17, s17, 0\ns_mov_b32 s18, 262144\ns_mov_b32 s19, 0x20000")
    e("v_cndmask_b32 v3, v15, v16, vcc")
    e("s_add_u32 s41, s38, 1024")
    e("s_lshl_b32 s39, s41, 3")
    e("s_lshl_b32 s41, s41, 2")
    e("s_mul_i32 s41, s41, s37")
    e("s_add_u32 s40, s40, s41")
    e("s_mul_i32 s41, s35, %d" % headreg)
    e("s_add_u32 s40, s40, s41")
    e("s_lshl_b32 s37, s37, 12")
    e("v_add_u32 v3, s37, v3")
    e("s_mul_i32 s42, s39, %d" % slots)
    e("s_add_u32 s42, s42, s40")
    e("s_mov_b32 s43, s40")
    def dma():
        e("s_mov_b32 m0, s43")
        e("s_add_u32 s43, s43, s39")
        e("buffer_load_dwordx4 v3, s[16:19], 0 offen %s lds" % aux)
        for i in range(1, 4):
            e("s_add_u32 m0, m0, s38")
            if i == 1: e("s_cmp_ge_u32 s43, s42")
            elif i == 2: e("s_nop 0")
            else: e("s_nop 0")
            if i == 1: e("s_cselect_b32 s43, s40, s43")
            e("buffer_load_dwordx4 v3, s[16:19], 0 offen offset:%d %s lds" % (i * 1024, aux))
        e("v_add_u32 v3, 0x2000, v3")
    e("s_cmp_ge_u32 s3, 8")
    e("s_cbranch_scc1 L_noload0")
    for t in range(slots - 1):
        dma()
    e("s_branch L_pro2")
    e("L_noload0:")
    if prio: e("s_setprio %d" % prio)
    e("L_pro2:")
    e("v_add_u32 v1, s34, v1")
    e("s_add_u32 s34, s34, %d" % (slots * KT))
    e("v_add_u32 v2, s34, v2")
    for i in range(64):
        e("v_mov_b32 v%d, 0" % (O + i))
    e("v_mov_b32 v6, 0")
    e("s_mov_b32 s44, 0")
    e("s_mov_b32 s45, 0")
    e("s_mov_b32 s46, 0")
    e("s_cmp_ge_u32 s3, 8")
    e("s_cbranch_scc0 L_loop")
    e("s_waitcnt vmcnt(0)")

    def qk(vk, vv, interleave_v=True):
        for s in range(8):
            e("ds_read_b128 %s, %s offset:%d" % (vr(F + 4 * s, 4), vk, s * 32))
        for s in range(8):
            e("s_waitcnt lgkmcnt(%d)" % ((7 + s) if interleave_v else (7 - s)))
            e("v_mfma_f32_32x32x16_bf16 %s, %s, %s, %s" % (vr(S, 16), vr(F + 4 * s, 4), vr(Q + 4 * s, 4), "0" if s == 0 else vr(S, 16)))
            if interleave_v:
                vreads(vv, s)
    def vreads(vv, f):
        s, db = divmod(f, 4)
        for g in range(2):
            e("ds_read_b64_tr_b16 %s, %s offset:%d" % (vr(F + 4 * f + 2 * g, 2), vv, (2 * s + g) * 256 + db * 64))
    def rowmax(dst, tmp):
        e("v_max3_f32 %s, v%d, v%d, v%d" % (dst, S, S + 1, S + 2))
        for i in range(3, 15, 2):
            e("v_max3_f32 %s, %s, v%d, v%d" % (dst, dst, S + i, S + i + 1))
        e("v_max_f32 %s, %s, v%d" % (dst, dst, S + 15))
        e("v_mov_b32 %s, %s" % (tmp, dst))
        e("s_nop 1")
        e("v_permlane32_swap_b32 %s, %s" % (tmp, dst))
        e("s_nop 1")
        e("v_max_f32 %s, %s, %s" % (dst, dst, tmp))
    def sm_half(s):
        b = S + 8 * s
        for i in range(8):
            e("v_fma_f32 v%d, v%d, s50, -v7" % (b + i, b + i))
        for i in range(8):
            e("v_exp_f32 v%d, v%d" % (b + i, b + i))
        ops = []
        for i in range(4):
            ops.append("v_add_f32 v6, v6, v%d" % (b + 2 * i))
            ops.append("v_add_f32 v6, v6, v%d" % (b + 2 * i + 1))
            ops.append("v_cvt_pk_bf16_f32 v%d, v%d, v%d" % (b + i, b + 2 * i, b + 2 * i + 1))
        for o in ops: e(o)
    def pv(s, db):
        e("v_mfma_f32_32x32x16_bf16 %s, %s, %s, %s" % (vr(O + 16 * db, 16), vr(F + 4 * (4 * s + db), 4), vr(S + 8 * s, 4), vr(O + 16 * db, 16)))

    e(".p2align 6")
    e("L_loop:")
    e("s_waitcnt vmcnt(%d)" % (4 * (slots - 2)))
    e("s_barrier")
    e("s_cmp_ge_u32 s3, 8")
    e("s_cbranch_scc1 L_noload")
    dma()
    e("L_noload:")
    e("v_add_u32 v4, s45, v1")
    e("v_add_u32 v5, s46, v2")
    qk("v4", "v5")
    e("s_add_u32 s45, s45, %d" % KT)
    e("s_add_u32 s46, s46, %d" % VT)
    e("s_cmp_ge_u32 s45, %d" % (slots * KT))
    e("s_cselect_b32 s45, 0, s45")
    e("s_cselect_b32 s46, 0, s46")
    e("s_cmp_lg_u32 s44, 0")
    e("s_nop 4")
    e("s_cbranch_scc1 L_nomax")
    rowmax("v7", "v0")
    e("v_mul_f32 v7, s50, v7")
    e("L_nomax:")
    if stamps:
        pass
    sm_half(0)
    b = S + 8
    seq = []
    for i in range(8): seq.append("v_fma_f32 v%d, v%d, s50, -v7" % (b + i, b + i))
    for i in range(8): seq.append("v_exp_f32 v%d, v%d" % (b + i, b + i))
    for i in range(4):
        seq.append("v_add_f32 v6, v6, v%d" % (b + 2 * i))
        seq.append("v_add_f32 v6, v6, v%d" % (b + 2 * i + 1))
        seq.append("v_cvt_pk_bf16_f32 v%d, v%d, v%d" % (b + i, b + 2 * i, b + 2 * i + 1))
    cuts = [2, 9, 13, 17]
    k = 0
    for n, ins in enumerate(seq):
        if k < 4 and n == cuts[k]:
            if k == 0: e("s_waitcnt lgkmcnt(8)")
            pv(0, k); k += 1
        e(ins)
    e("s_add_u32 s44, s44, 1")
    e("s_waitcnt lgkmcnt(0)")
    for db in range(4): pv(1, db)
    e("s_cmp_lt_u32 s44, 32")
    e("s_cbranch_scc1 L_loop")

    if stamps: e("s_memrealtime s[62:63]")
    e("s_waitcnt vmcnt(0)")
    e("s_barrier")
    e("s_mul_i32 s47, s3, %d" % PRIV)
    e("v_mov_b32 v0, v6")
    e("s_nop 1")
    e("v_permlane32_swap_b32 v0, v6")
    e("s_nop 1")
    e("v_add_f32 v6, v6, v0")
    e("s_mov_b32 s48, 0x%08x" % f2u(2.0 ** (-5 if force_fb else 30)))
    e("v_cmp_nle_f32 vcc, v6, s48")
    e("s_nop 4")
    e("s_cbranch_vccnz L_fallback")
    e("L_epi:")
    e("v_rcp_f32 v6, v6")
    e("v_mbcnt_lo_u32_b32 v0, -1, 0")
    e("v_mbcnt_hi_u32_b32 v0, -1, v0")
    if omode == "lds":
        e("v_and_b32 v9, 31, v0")
        e("v_lshrrev_b32 v10, 5, v0")
        e("v_mul_u32_u24 v4, 272, v9")
        e("v_lshl_add_u32 v4, v10, 4, v4")
        e("v_add_u32 v4, s47, v4")
        e("v_lshrrev_b32 v9, 4, v0")
        e("v_mul_u32_u24 v5, 272, v9")
        e("v_and_b32 v10, 15, v0")
        e("v_lshl_add_u32 v5, v10, 4, v5")
        e("v_add_u32 v5, s47, v5")
        e("v_lshlrev_b32 v3, 4, v0")
    else:
        e("v_and_b32 v9, 31, v0")
        e("v_lshrrev_b32 v10, 5, v0")
        e("v_lshlrev_b32 v3, 8, v9")
        e("v_lshl_add_u32 v3, v10, 4, v3")
    for db in range(4):
        for kp in range(2):
            o = O + 16 * db + 8 * kp
            t = F + 4 * (2 * db + kp)
            for i in range(8):
                e("v_mul_f32 v%d, v%d, v6" % (o + i, o + i))
            for i in range(4):
                e("v_cvt_pk_bf16_f32 v%d, v%d, v%d" % (t + i, o + 2 * i, o + 2 * i + 1))
            e("s_nop 1")
            e("v_permlane32_swap_b32 v%d, v%d" % (t, t + 2))
            e("v_permlane32_swap_b32 v%d, v%d" % (t + 1, t + 3))
            if omode == "lds":
                e("ds_write_b128 v4, %s offset:%d" % (vr(t, 4), db * 64 + kp * 32))
            else:
                e("buffer_store_dwordx4 %s, v3, s[24:27], 0 offen offset:%d %s" % (vr(t, 4), db * 64 + kp * 32, staux))
    if omode == "lds":
        e("s_waitcnt lgkmcnt(0)")
        for n in range(8):
            e("ds_read_b128 %s, v5 offset:%d" % (vr(O + 4 * n, 4), n * 4 * 272))
        for n in range(8):
            e("s_waitcnt lgkmcnt(%d)" % (7 - n))
            if n == 4: e("v_add_u32 v3, 0x1000, v3")
            e("buffer_store_dwordx4 %s, v3, s[24:27], 0 offen offset:%d %s" % (vr(O + 4 * n, 4), (n % 4) * 1024, staux))
    if stamps:
        e("s_waitcnt vmcnt(0)")
        e("s_memrealtime s[64:65]")
        e("s_waitcnt lgkmcnt(0)")
        e("s_cmp_lg_u32 s3, 11")
        e("s_cbranch_scc1 L_end")
        e("s_lshl_b32 s35, s2, 6")
        e("s_add_u32 s58, s58, s35\ns_addc_u32 s59, s59, 0")
        e("v_mov_b32 v8, s60\nv_mov_b32 v9, s61\nv_mov_b32 v10, s62\nv_mov_b32 v11, s63\nv_mov_b32 v12, s64\nv_mov_b32 v13, s65")
        e("s_getreg_b32 s35, hwreg(HW_REG_XCC_ID)")
        e("s_getreg_b32 s36, hwreg(HW_REG_HW_ID)")
        e("v_mov_b32 v14, s35\nv_mov_b32 v15, s36\nv_mov_b32 v6, 0")
        e("s_mov_b64 exec, 1")
        e("global_store_dwordx4 v6, v[8:11], s[58:59]")
        e("global_store_dwordx4 v6, v[12:15], s[58:59] offset:16")
    e("L_end:")
    e("s_endpgm")

    e("L_fallback:")
    e("v_mbcnt_lo_u32_b32 v0, -1, 0")
    e("v_mbcnt_hi_u32_b32 v0, -1, v0")
    e("s_lshl_b32 s36, s32, 18")
    e("s_add_u32 s16, s6, s36\ns_addc_u32 s17, s7, 0\ns_mov_b32 s18, 262144\ns_mov_b32 s19, 0x20000")
    e("s_add_u32 s20, s8, s36\ns_addc_u32 s21, s9, 0\ns_mov_b32 s22, 262144\ns_mov_b32 s23, 0x20000")
    e("s_mul_i32 s34, s30, %d" % headreg)
    e("v_subrev_u32 v4, s34, v1")
    e("v_add_u32 v4, s47, v4")
    e("s_add_u32 s34, s34, %d" % (slots * KT))
    e("v_subrev_u32 v5, s34, v2")
    e("v_add_u32 v5, s47, v5")
    e("v_bfe_u32 v1, v0, 4, 1")
    e("v_xor_b32 v1, v1, v0")
    e("v_lshlrev_b32 v1, 4, v1")
    e("v_lshlrev_b32 v2, 4, v0")
    for i in range(64):
        e("v_mov_b32 v%d, 0" % (O + i))
    e("v_mov_b32 v6, 0")
    e("v_mov_b32 v3, 0xff800000")
    e("s_mov_b32 s44, 0")
    e("L_fb_loop:")
    for i in range(8):
        e("s_add_u32 m0, s47, %d" % (i * KSTR))
        e("s_nop 0")
        e("buffer_load_dwordx4 v1, s[16:19], 0 offen lds")
        e("v_add_u32 v1, 0x400, v1")
    e("s_waitcnt vmcnt(0)")
    qk("v4", "v5", interleave_v=False)
    for i in range(8):
        e("s_add_u32 m0, s47, %d" % (i * VSTR))
        e("s_nop 0")
        e("buffer_load_dwordx4 v2, s[20:23], 0 offen lds")
        e("v_add_u32 v2, 0x400, v2")
    rowmax("v7", "v0")
    e("v_max_f32 v7, v7, v3")
    e("v_sub_f32 v0, v3, v7")
    e("v_mul_f32 v0, s50, v0")
    e("v_exp_f32 v0, v0")
    e("v_mov_b32 v3, v7")
    e("v_mul_f32 v7, s50, v7")
    e("v_mul_f32 v6, v6, v0")
    for i in range(64):
        e("v_mul_f32 v%d, v%d, v0" % (O + i, O + i))
    sm_half(0)
    sm_half(1)
    e("s_waitcnt vmcnt(0)")
    for f in range(8): vreads("v5", f)
    e("s_waitcnt lgkmcnt(0)")
    for s in range(2):
        for db in range(4): pv(s, db)
    e("s_add_u32 s44, s44, 1")
    e("s_cmp_lt_u32 s44, 32")
    e("s_nop 7")
    e("s_nop 7")
    e("s_cbranch_scc1 L_fb_loop")
    e("v_mov_b32 v0, v6")
    e("s_nop 1")
    e("v_permlane32_swap_b32 v0, v6")
    e("s_nop 1")
    e("v_add_f32 v6, v6, v0")
    e("s_branch L_epi")

    e('.section .rodata,"a"\n.p2align 6\n.amdhsa_kernel %s' % KN)
    e("  .amdhsa_next_free_vgpr 152\n  .amdhsa_next_free_sgpr 80\n  .amdhsa_accum_offset 152")
    e("  .amdhsa_group_segment_fixed_size 0\n  .amdhsa_kernarg_size 48\n  .amdhsa_user_sgpr_count 2")
    e("  .amdhsa_user_sgpr_kernarg_segment_ptr 1\n  .amdhsa_system_sgpr_workgroup_id_x 1")
    e("  .amdhsa_float_denorm_mode_32 3")
    e(".end_amdhsa_kernel")
    open(path, "w").write("\n".join(L) + "\n")

if __name__ == "__main__":
    gen("k3_s2.s", slots=2)
    gen("k3_s3.s", slots=3)
    gen("k3_s4.s", slots=4)
    gen("k3_s3_dir.s", slots=3, omode="direct")
    gen("k3_s3_fb.s", slots=3, force_fb=True)
    gen("k3_s3_st.s", slots=3, stamps=True)
```

```python
import sys, struct, math

KN = "standalone__mha_softmax__near_ridge_kernel"
HEADER = open("standalone__mha_softmax__near_ridge.s.ref").read().split("; Override launch")[0]

def f2u(x):
    return struct.unpack("<I", struct.pack("<f", x))[0]

KSTR, VSTR = 1056, 1088
KT, VT = 8 * KSTR, 8 * VSTR
PRIV = 8704

def gen(path, slots=3, aux="nt", qaux="nt", staux="nt", omode="lds", stamps=False, force_fb=False, prio=0, trace=False, dbg=False):
    L = []
    e = L.append
    headreg = slots * (KT + VT)
    lds = max(2 * headreg, 12 * PRIV)
    C = (1.0 / math.sqrt(128.0)) * math.log2(math.e)
    S, F, Q, O = 8, 24, 56, 88
    def vr(b, n): return "v[%d:%d]" % (b, b + n - 1)

    e(HEADER.rstrip())
    e("; @launch grid=(256,1,1) block=(768,1,1) lds=%d" % lds)
    e('.amdgcn_target "amdgcn-amd-amdhsa--gfx950"')
    e(".text\n.globl %s\n.p2align 8\n.type %s,@function\n%s:" % (KN, KN, KN))
    e("s_cmp_ge_u32 s2, 256")
    e("s_cbranch_scc1 L_end")
    if stamps: e("s_memrealtime s[60:61]\ns_memtime s[66:67]")
    e("s_load_dwordx4 s[4:7], s[0:1], 0")
    e("s_load_dwordx4 s[8:11], s[0:1], 16")
    if stamps: e("s_load_dwordx2 s[58:59], s[0:1], 40")
    e("v_lshrrev_b32 v1, 6, v0")
    e("v_and_b32 v0, 63, v0")
    e("v_readfirstlane_b32 s3, v1")
    e("v_and_b32 v9, 31, v0")
    e("v_lshrrev_b32 v10, 5, v0")
    e("v_and_b32 v11, 7, v0")
    e("v_bfe_u32 v12, v0, 3, 2")
    e("v_mul_u32_u24 v1, %d, v11" % KSTR)
    e("v_lshl_add_u32 v1, v12, 8, v1")
    e("v_and_b32 v13, 1, v12")
    e("v_xor_b32 v13, v13, v10")
    e("v_lshl_add_u32 v1, v13, 4, v1")
    e("v_bfe_u32 v11, v0, 2, 2")
    e("v_lshl_add_u32 v11, v10, 2, v11")
    e("v_mul_u32_u24 v2, %d, v11" % VSTR)
    e("v_bfe_u32 v12, v0, 4, 1")
    e("v_lshl_add_u32 v2, v12, 5, v2")
    e("v_and_b32 v12, 3, v0")
    e("v_lshl_add_u32 v2, v12, 3, v2")
    e("v_lshlrev_b32 v14, 8, v9")
    e("v_lshl_add_u32 v14, v10, 4, v14")
    e("v_bfe_u32 v12, v0, 4, 1")
    e("v_xor_b32 v15, v12, v0")
    e("v_lshlrev_b32 v15, 4, v15")
    e("v_lshlrev_b32 v16, 4, v0")
    e("s_cmp_ge_u32 s3, 6")
    e("s_cselect_b32 s30, 1, 0")
    e("s_mul_i32 s31, s30, 6")
    e("s_sub_u32 s31, s3, s31")
    e("s_lshl_b32 s32, s2, 1")
    e("s_add_u32 s32, s32, s30")
    e("s_mul_i32 s33, s32, 49152")
    e("s_lshl_b32 s31, s31, 13")
    e("s_add_u32 s33, s33, s31")
    e("s_mul_i32 s34, s30, %d" % headreg)
    e("s_mov_b32 s50, 0x%08x" % f2u(C))
    e("s_waitcnt lgkmcnt(0)")
    e("s_add_u32 s12, s4, s33\ns_addc_u32 s13, s5, 0\ns_mov_b32 s14, 8192\ns_mov_b32 s15, 0x20000")
    for s in range(8):
        e("buffer_load_dwordx4 %s, v14, s[12:15], 0 offen offset:%d %s" % (vr(Q + 4 * s, 4), s * 32, qaux))
    e("s_add_u32 s24, s10, s33\ns_addc_u32 s25, s11, 0\ns_mov_b32 s26, 8192\ns_mov_b32 s27, 0x20000")
    e("s_lshr_b32 s35, s3, 2")
    e("s_and_b32 s35, s35, 1")
    e("s_lshl_b32 s36, s2, 1")
    e("s_add_u32 s36, s36, s35")
    e("s_lshl_b32 s36, s36, 18")
    e("s_and_b32 s37, s3, 1")
    e("s_bitcmp1_b32 s3, 1")
    e("s_cselect_b32 s16, s8, s6")
    e("s_cselect_b32 s17, s9, s7")
    e("s_cselect_b32 s38, %d, %d" % (VSTR - 1024, KSTR - 1024))
    e("s_cselect_b32 s40, %d, 0" % (slots * KT))
    e("s_cselect_b64 vcc, -1, 0")
    e("s_add_u32 s16, s16, s36\ns_addc_u32 s17, s17, 0\ns_mov_b32 s18, 262144\ns_mov_b32 s19, 0x20000")
    e("v_cndmask_b32 v3, v15, v16, vcc")
    e("s_add_u32 s41, s38, 1024")
    e("s_lshl_b32 s39, s41, 3")
    e("s_lshl_b32 s41, s41, 2")
    e("s_mul_i32 s41, s41, s37")
    e("s_add_u32 s40, s40, s41")
    e("s_mul_i32 s41, s35, %d" % headreg)
    e("s_add_u32 s40, s40, s41")
    e("s_lshl_b32 s37, s37, 12")
    e("v_add_u32 v3, s37, v3")
    e("s_mul_i32 s42, s39, %d" % slots)
    e("s_add_u32 s42, s42, s40")
    e("s_mov_b32 s43, s40")
    def dma():
        e("s_mov_b32 m0, s43")
        e("s_add_u32 s43, s43, s39")
        e("buffer_load_dwordx4 v3, s[16:19], 0 offen %s lds" % aux)
        for i in range(1, 4):
            e("s_add_u32 m0, m0, s38")
            if i == 1: e("s_cmp_ge_u32 s43, s42")
            elif i == 2: e("s_nop 0")
            else: e("s_nop 0")
            if i == 1: e("s_cselect_b32 s43, s40, s43")
            e("buffer_load_dwordx4 v3, s[16:19], 0 offen offset:%d %s lds" % (i * 1024, aux))
        e("v_add_u32 v3, 0x2000, v3")
    e("s_cmp_ge_u32 s3, 8")
    e("s_cbranch_scc1 L_noload0")
    for t in range(slots - 1):
        dma()
    e("s_branch L_pro2")
    e("L_noload0:")
    if prio: e("s_setprio %d" % prio)
    e("L_pro2:")
    e("v_add_u32 v1, s34, v1")
    e("s_add_u32 s34, s34, %d" % (slots * KT))
    e("v_add_u32 v2, s34, v2")
    for i in range(64):
        e("v_mov_b32 v%d, 0" % (O + i))
    e("v_mov_b32 v6, 0")
    e("s_mov_b32 s44, 0")
    e("s_mov_b32 s45, 0")
    e("s_mov_b32 s46, 0")
    e("s_cmp_ge_u32 s3, 8")
    e("s_cbranch_scc0 L_loop")
    e("s_waitcnt vmcnt(0)")

    def qk(vk, vv, interleave_v=True):
        for s in range(8):
            e("ds_read_b128 %s, %s offset:%d" % (vr(F + 4 * s, 4), vk, s * 32))
        for s in range(8):
            e("s_waitcnt lgkmcnt(%d)" % ((7 + s) if interleave_v else (7 - s)))
            e("v_mfma_f32_32x32x16_bf16 %s, %s, %s, %s" % (vr(S, 16), vr(F + 4 * s, 4), vr(Q + 4 * s, 4), "0" if s == 0 else vr(S, 16)))
            if interleave_v:
                vreads(vv, s)
    def vreads(vv, f):
        s, db = divmod(f, 4)
        for g in range(2):
            e("ds_read_b64_tr_b16 %s, %s offset:%d" % (vr(F + 4 * f + 2 * g, 2), vv, (2 * s + g) * 256 + db * 64))
    def rowmax(dst, tmp):
        e("v_max3_f32 %s, v%d, v%d, v%d" % (dst, S, S + 1, S + 2))
        for i in range(3, 15, 2):
            e("v_max3_f32 %s, %s, v%d, v%d" % (dst, dst, S + i, S + i + 1))
        e("v_max_f32 %s, %s, v%d" % (dst, dst, S + 15))
        e("v_mov_b32 %s, %s" % (tmp, dst))
        e("s_nop 1")
        e("v_permlane32_swap_b32 %s, %s" % (tmp, dst))
        e("s_nop 1")
        e("v_max_f32 %s, %s, %s" % (dst, dst, tmp))
    def sm_half(s):
        b = S + 8 * s
        for i in range(8):
            e("v_fma_f32 v%d, v%d, s50, -v7" % (b + i, b + i))
        for i in range(8):
            e("v_exp_f32 v%d, v%d" % (b + i, b + i))
        ops = []
        for i in range(4):
            ops.append("v_add_f32 v6, v6, v%d" % (b + 2 * i))
            ops.append("v_add_f32 v6, v6, v%d" % (b + 2 * i + 1))
            ops.append("v_cvt_pk_bf16_f32 v%d, v%d, v%d" % (b + i, b + 2 * i, b + 2 * i + 1))
        for o in ops: e(o)
    def pv(s, db):
        e("v_mfma_f32_32x32x16_bf16 %s, %s, %s, %s" % (vr(O + 16 * db, 16), vr(F + 4 * (4 * s + db), 4), vr(S + 8 * s, 4), vr(O + 16 * db, 16)))

    e(".p2align 6")
    e("L_loop:")
    e("s_waitcnt vmcnt(%d)" % (4 * (slots - 2)))
    e("s_barrier")
    e("s_cmp_ge_u32 s3, 8")
    e("s_cbranch_scc1 L_noload")
    dma()
    e("L_noload:")
    e("v_add_u32 v4, s45, v1")
    e("v_add_u32 v5, s46, v2")
    qk("v4", "v5")
    e("s_add_u32 s45, s45, %d" % KT)
    e("s_add_u32 s46, s46, %d" % VT)
    e("s_cmp_ge_u32 s45, %d" % (slots * KT))
    e("s_cselect_b32 s45, 0, s45")
    e("s_cselect_b32 s46, 0, s46")
    e("s_cmp_lg_u32 s44, 0")
    e("s_nop 4")
    e("s_cbranch_scc1 L_nomax")
    rowmax("v7", "v0")
    e("v_mul_f32 v7, s50, v7")
    e("L_nomax:")
    if stamps:
        pass
    sm_half(0)
    b = S + 8
    seq = []
    for i in range(8): seq.append("v_fma_f32 v%d, v%d, s50, -v7" % (b + i, b + i))
    for i in range(8): seq.append("v_exp_f32 v%d, v%d" % (b + i, b + i))
    for i in range(4):
        seq.append("v_add_f32 v6, v6, v%d" % (b + 2 * i))
        seq.append("v_add_f32 v6, v6, v%d" % (b + 2 * i + 1))
        seq.append("v_cvt_pk_bf16_f32 v%d, v%d, v%d" % (b + i, b + 2 * i, b + 2 * i + 1))
    cuts = [2, 9, 13, 17]
    k = 0
    for n, ins in enumerate(seq):
        if k < 4 and n == cuts[k]:
            if k == 0: e("s_waitcnt lgkmcnt(8)")
            pv(0, k); k += 1
        e(ins)
    e("s_add_u32 s44, s44, 1")
    if trace:
        e("s_memrealtime s[70:71]")
        e("s_memtime s[72:73]")
    e("s_waitcnt lgkmcnt(0)")
    for db in range(4): pv(1, db)
    if trace:
        e("s_cmp_lg_u32 s3, 11")
        e("s_cbranch_scc1 L_notrace")
        e("s_lshl_b32 s74, s2, 8")
        e("s_lshl_b32 s75, s44, 3")
        e("s_add_u32 s74, s74, s75")
        e("s_add_u32 s74, s74, 0x10000 - 8")
        e("v_mov_b32 v152, s70\nv_mov_b32 v153, s72\nv_mov_b32 v154, s74")
        e("s_mov_b64 exec, 1")
        e("global_store_dwordx2 v154, v[152:153], s[58:59]")
        e("s_mov_b64 exec, -1")
        e("L_notrace:")
    e("s_cmp_lt_u32 s44, 32")
    e("s_cbranch_scc1 L_loop")

    if stamps: e("s_memrealtime s[62:63]\ns_memtime s[68:69]")
    e("s_waitcnt vmcnt(0)")
    e("s_barrier")
    e("s_mul_i32 s47, s3, %d" % PRIV)
    e("v_mov_b32 v0, v6")
    e("s_nop 1")
    e("v_permlane32_swap_b32 v0, v6")
    e("s_nop 1")
    e("v_add_f32 v6, v6, v0")
    e("s_mov_b32 s48, 0x%08x" % f2u(2.0 ** (-5 if force_fb else 30)))
    e("v_cmp_nle_f32 vcc, v6, s48")
    e("s_nop 4")
    e("s_cbranch_vccnz L_fallback")
    e("L_epi:")
    e("v_rcp_f32 v6, v6")
    e("v_mbcnt_lo_u32_b32 v0, -1, 0")
    e("v_mbcnt_hi_u32_b32 v0, -1, v0")
    if omode == "lds":
        e("v_and_b32 v9, 31, v0")
        e("v_lshrrev_b32 v10, 5, v0")
        e("v_mul_u32_u24 v4, 272, v9")
        e("v_lshl_add_u32 v4, v10, 4, v4")
        e("v_add_u32 v4, s47, v4")
        e("v_lshrrev_b32 v9, 4, v0")
        e("v_mul_u32_u24 v5, 272, v9")
        e("v_and_b32 v10, 15, v0")
        e("v_lshl_add_u32 v5, v10, 4, v5")
        e("v_add_u32 v5, s47, v5")
        e("v_lshlrev_b32 v3, 4, v0")
    else:
        e("v_and_b32 v9, 31, v0")
        e("v_lshrrev_b32 v10, 5, v0")
        e("v_lshlrev_b32 v3, 8, v9")
        e("v_lshl_add_u32 v3, v10, 4, v3")
    for db in range(4):
        for kp in range(2):
            o = O + 16 * db + 8 * kp
            t = F + 4 * (2 * db + kp)
            for i in range(8):
                e("v_mul_f32 v%d, v%d, v6" % (o + i, o + i))
            for i in range(4):
                e("v_cvt_pk_bf16_f32 v%d, v%d, v%d" % (t + i, o + 2 * i, o + 2 * i + 1))
            e("s_nop 1")
            e("v_permlane32_swap_b32 v%d, v%d" % (t, t + 2))
            e("v_permlane32_swap_b32 v%d, v%d" % (t + 1, t + 3))
            if omode == "lds":
                e("ds_write_b128 v4, %s offset:%d" % (vr(t, 4), db * 64 + kp * 32))
            else:
                e("buffer_store_dwordx4 %s, v3, s[24:27], 0 offen offset:%d %s" % (vr(t, 4), db * 64 + kp * 32, staux))
    if omode == "lds":
        e("s_waitcnt lgkmcnt(0)")
        for n in range(8):
            e("ds_read_b128 %s, v5 offset:%d" % (vr(O + 4 * n, 4), n * 4 * 272))
        for n in range(8):
            e("s_waitcnt lgkmcnt(%d)" % (7 - n))
            if n == 4: e("v_add_u32 v3, 0x1000, v3")
            e("buffer_store_dwordx4 %s, v3, s[24:27], 0 offen offset:%d %s" % (vr(O + 4 * n, 4), (n % 4) * 1024, staux))
    if stamps:
        e("s_waitcnt vmcnt(0)")
        e("s_memrealtime s[64:65]")
        e("s_waitcnt lgkmcnt(0)")
        e("s_cmp_lg_u32 s3, 11")
        e("s_cbranch_scc1 L_end")
        e("s_lshl_b32 s35, s2, 6")
        e("s_add_u32 s58, s58, s35\ns_addc_u32 s59, s59, 0")
        e("v_mov_b32 v8, s60\nv_mov_b32 v9, s61\nv_mov_b32 v10, s62\nv_mov_b32 v11, s63\nv_mov_b32 v12, s64\nv_mov_b32 v13, s65")
        e("s_getreg_b32 s35, hwreg(HW_REG_XCC_ID)")
        e("s_getreg_b32 s36, hwreg(HW_REG_HW_ID)")
        e("v_mov_b32 v14, s35\nv_mov_b32 v15, s36\nv_mov_b32 v6, 0")
        e("s_mov_b64 exec, 1")
        e("global_store_dwordx4 v6, v[8:11], s[58:59]")
        e("global_store_dwordx4 v6, v[12:15], s[58:59] offset:16")
        e("v_mov_b32 v16, s66\nv_mov_b32 v17, s67\nv_mov_b32 v18, s68\nv_mov_b32 v19, s69")
        e("global_store_dwordx4 v6, v[16:19], s[58:59] offset:32")
    if dbg:
        e("s_load_dwordx2 s[58:59], s[0:1], 32")
        e("s_waitcnt lgkmcnt(0)")
        e("s_not_b32 s35, s60")
        e("s_sub_u32 s66, s68, s66")
        e("s_sub_u32 s62, s62, s60")
        e("v_mov_b32 v8, s35\nv_mov_b32 v9, s64\nv_mov_b32 v10, s66\nv_mov_b32 v11, s62")
        e("global_atomic_umax v6, v8, s[58:59]")
        e("global_atomic_umax v6, v9, s[58:59] offset:4")
        e("global_atomic_add v6, v10, s[58:59] offset:8")
        e("global_atomic_add v6, v11, s[58:59] offset:12")
    e("L_end:")
    e("s_endpgm")

    e("L_fallback:")
    e("v_mbcnt_lo_u32_b32 v0, -1, 0")
    e("v_mbcnt_hi_u32_b32 v0, -1, v0")
    e("s_lshl_b32 s36, s32, 18")
    e("s_add_u32 s16, s6, s36\ns_addc_u32 s17, s7, 0\ns_mov_b32 s18, 262144\ns_mov_b32 s19, 0x20000")
    e("s_add_u32 s20, s8, s36\ns_addc_u32 s21, s9, 0\ns_mov_b32 s22, 262144\ns_mov_b32 s23, 0x20000")
    e("s_mul_i32 s34, s30, %d" % headreg)
    e("v_subrev_u32 v4, s34, v1")
    e("v_add_u32 v4, s47, v4")
    e("s_add_u32 s34, s34, %d" % (slots * KT))
    e("v_subrev_u32 v5, s34, v2")
    e("v_add_u32 v5, s47, v5")
    e("v_bfe_u32 v1, v0, 4, 1")
    e("v_xor_b32 v1, v1, v0")
    e("v_lshlrev_b32 v1, 4, v1")
    e("v_lshlrev_b32 v2, 4, v0")
    for i in range(64):
        e("v_mov_b32 v%d, 0" % (O + i))
    e("v_mov_b32 v6, 0")
    e("v_mov_b32 v3, 0xff800000")
    e("s_mov_b32 s44, 0")
    e("L_fb_loop:")
    for i in range(8):
        e("s_add_u32 m0, s47, %d" % (i * KSTR))
        e("s_nop 0")
        e("buffer_load_dwordx4 v1, s[16:19], 0 offen lds")
        e("v_add_u32 v1, 0x400, v1")
    e("s_waitcnt vmcnt(0)")
    qk("v4", "v5", interleave_v=False)
    for i in range(8):
        e("s_add_u32 m0, s47, %d" % (i * VSTR))
        e("s_nop 0")
        e("buffer_load_dwordx4 v2, s[20:23], 0 offen lds")
        e("v_add_u32 v2, 0x400, v2")
    rowmax("v7", "v0")
    e("v_max_f32 v7, v7, v3")
    e("v_sub_f32 v0, v3, v7")
    e("v_mul_f32 v0, s50, v0")
    e("v_exp_f32 v0, v0")
    e("v_mov_b32 v3, v7")
    e("v_mul_f32 v7, s50, v7")
    e("v_mul_f32 v6, v6, v0")
    for i in range(64):
        e("v_mul_f32 v%d, v%d, v0" % (O + i, O + i))
    sm_half(0)
    sm_half(1)
    e("s_waitcnt vmcnt(0)")
    for f in range(8): vreads("v5", f)
    e("s_waitcnt lgkmcnt(0)")
    for s in range(2):
        for db in range(4): pv(s, db)
    e("s_add_u32 s44, s44, 1")
    e("s_cmp_lt_u32 s44, 32")
    e("s_nop 7")
    e("s_nop 7")
    e("s_cbranch_scc1 L_fb_loop")
    e("v_mov_b32 v0, v6")
    e("s_nop 1")
    e("v_permlane32_swap_b32 v0, v6")
    e("s_nop 1")
    e("v_add_f32 v6, v6, v0")
    e("s_branch L_epi")

    e('.section .rodata,"a"\n.p2align 6\n.amdhsa_kernel %s' % KN)
    e("  .amdhsa_next_free_vgpr 160\n  .amdhsa_next_free_sgpr 80\n  .amdhsa_accum_offset 160")
    e("  .amdhsa_group_segment_fixed_size 0\n  .amdhsa_kernarg_size 48\n  .amdhsa_user_sgpr_count 2")
    e("  .amdhsa_user_sgpr_kernarg_segment_ptr 1\n  .amdhsa_system_sgpr_workgroup_id_x 1")
    e("  .amdhsa_float_denorm_mode_32 3")
    e(".end_amdhsa_kernel")
    open(path, "w").write("\n".join(L) + "\n")

if __name__ == "__main__":
    gen("k3_s2.s", slots=2)
    gen("k3_s3.s", slots=3)
    gen("k3_s4.s", slots=4)
    gen("k3_s3_dir.s", slots=3, omode="direct")
    gen("k3_s3_fb.s", slots=3, force_fb=True)
    gen("k3_s3_st.s", slots=3, stamps=True, trace=True)
    gen("k3_s3_dbg.s", slots=3, stamps=True, dbg=True)
```
